```python
import torch

def _softmax(x, axis=-1):
    return torch.softmax(x, dim=axis)
def _gelu(x):
    return torch.nn.functional.gelu(x, approximate="tanh")
def _silu(x):
    return torch.nn.functional.silu(x)
def _sigmoid(x):
    return torch.sigmoid(x)
def _layernorm(x, axis=-1, eps=1e-5):
    m = x.mean(dim=axis, keepdim=True)
    v = x.var(dim=axis, keepdim=True, unbiased=False)
    return (x - m) / torch.sqrt(v + eps)
def _scatter_add(tgt, idx, src, axis=0):
    return tgt.clone().index_add_(axis, idx, src)
def _segment_sum(src, seg, n):
    out = torch.zeros((n,) + src.shape[1:], dtype=src.dtype)
    return out.index_add_(0, seg, src)
def _pad(x, pw):
    flat = tuple(v for pair in reversed(pw) for v in pair)
    return torch.nn.functional.pad(x, flat)

kernel_name = 'parallel_sum__sliding_block__glu_gated_geglu__prompt'

def setup_inputs():

    _w = (lambda a: (lambda t: t.to(torch.bfloat16) if t.is_floating_point() else t)(torch.as_tensor(a)))
    def _A_setup():
        B, S, D = 1, 2048, 640
        return {
            "x": _w((lambda *s: torch.randn(*s, dtype=torch.bfloat16) * 0.05)(B, S, D)),
            "wqkv": _w((lambda *s: torch.randn(*s, dtype=torch.bfloat16) * 0.05)(D, 3 * D)),
            "wo": _w((lambda *s: torch.randn(*s, dtype=torch.bfloat16) * 0.05)(D, D)),
        }
    _A_in = _A_setup()

    def _B_setup():
        B, S, Dm, Df = 1, 2048, 640, 1536
        return {
            "x": _w((lambda *s: torch.randn(*s, dtype=torch.bfloat16) * 0.05)(B, S, Dm)),
            "w_gate": _w((lambda *s: torch.randn(*s, dtype=torch.bfloat16) * 0.8)(Dm, Df) * (Dm ** -0.5)),
            "w_up": _w((lambda *s: torch.randn(*s, dtype=torch.bfloat16) * 0.8)(Dm, Df) * (Dm ** -0.5)),
            "w_down": _w((lambda *s: torch.randn(*s, dtype=torch.bfloat16) * 0.8)(Df, Dm) * (Df ** -0.5)),
        }
    _B_in = _B_setup()

    return {
        "A_x": _A_in["x"],
        "A_wqkv": _A_in["wqkv"],
        "A_wo": _A_in["wo"],
        "B_x": _B_in["x"],
        "B_w_gate": _B_in["w_gate"],
        "B_w_up": _B_in["w_up"],
        "B_w_down": _B_in["w_down"],
    }

def reference(A_x, A_wqkv, A_wo, B_x, B_w_gate, B_w_up, B_w_down):
    def _A_ref(x, wqkv, wo):
        B, S, D = x.shape
        H = 32; Dh = D // H; W = 256
        qkv = (lambda x, *d: x.permute(*d))((x @ wqkv).reshape(B, S, 3, H, Dh), 2, 0, 3, 1, 4)
        q, k, v = qkv[0], qkv[1], qkv[2]
        scores = torch.einsum("bhqd,bhkd->bhqk", q, k) * (Dh ** -0.5)
        idx = torch.arange(S)
        mask = (idx[:, None] - idx[None, :] >= 0) & (idx[:, None] - idx[None, :] < W)
        scores = torch.where(mask[None, None], scores, -1e9)
        p = _softmax(scores, axis=-1)
        o = torch.einsum("bhqk,bhkd->bhqd", p, v)
        return (lambda x, *d: x.permute(*d))(o, 0, 2, 1, 3).reshape(B, S, D) @ wo

    def _B_ref(x, w_gate, w_up, w_down):
        g = torch.einsum("bsd,df->bsf", x, w_gate)
        u = torch.einsum("bsd,df->bsf", x, w_up)
        h = _gelu(g) * u
        return torch.einsum("bsf,fd->bsd", h, w_down)

    x = A_x
    xn = _layernorm(x, axis=-1)
    return x + _A_ref(xn, A_wqkv, A_wo) + _B_ref(xn, B_w_gate, B_w_up, B_w_down)
```

```python
import re

TRANS = ("v_exp_f32", "v_log_f32", "v_rcp_f32", "v_rsq_f32", "v_sqrt_f32", "v_sin_f32", "v_cos_f32")


class Tok:
    __slots__ = ("kind", "idx")

    def __init__(self, kind):
        self.kind = kind
        self.idx = None


class It:
    __slots__ = ("k", "text", "tok", "vm", "lg", "cost")

    def __init__(self, k, text="", tok=None, vm=None, lg=None):
        self.k = k
        self.text = text
        self.tok = tok
        self.vm = vm
        self.lg = lg


def _lst(x):
    if x is None:
        return []
    if isinstance(x, (list, tuple)):
        r = []
        for y in x:
            r += _lst(y)
        return r
    return [x]


class S:
    def __init__(self):
        self.a = []

    def i(self, text):
        for t in text.split("\n"):
            t = t.strip()
            if not t:
                continue
            m = re.match(r"s_cselect_b32 (\w+), (\d+|0x[0-9a-f]+), (\d+|0x[0-9a-f]+)$", t)
            if m and int(m.group(2), 0) > 64 and int(m.group(3), 0) > 64:
                self.a.append(It('i', f"s_mov_b32 {m.group(1)}, {m.group(3)}"))
                self.a.append(It('i', f"s_cmov_b32 {m.group(1)}, {m.group(2)}"))
                continue
            self.a.append(It('i', t))
        return self

    def c(self, text):
        self.a.append(It('c', text))

    def label(self, name):
        self.a.append(It('l', name))

    def vm(self, text):
        t = Tok('vm')
        self.a.append(It('i', text, tok=t))
        return t

    def ds(self, text):
        t = Tok('lg')
        self.a.append(It('i', text, tok=t))
        return t

    def wait(self, *toks):
        toks = _lst(list(toks))
        vm = [t for t in toks if t.kind == 'vm']
        lg = [t for t in toks if t.kind == 'lg']
        self.a.append(It('w', vm=vm, lg=lg))

    def drain(self, vm=True, lg=True):
        self.a.append(It('drain', vm=vm, lg=lg))

    def fork(self):
        self.a.append(It('fork'))

    def els(self):
        self.a.append(It('else'))

    def join(self):
        self.a.append(It('join'))

    def ext(self, other):
        self.a += other.a if isinstance(other, S) else other
        return self

    def __len__(self):
        return len(self.a)


def resolve_waits(items):
    out = []
    st = dict(vi=0, vd=0, li=0, ld=0)
    stack = []
    for it in items:
        if it.k == 'i':
            if it.tok is not None:
                if it.tok.kind == 'vm':
                    it.tok.idx = st['vi']
                    st['vi'] += 1
                else:
                    it.tok.idx = st['li']
                    st['li'] += 1
            out.append(it)
        elif it.k == 'w':
            parts = []
            if it.vm:
                for t in it.vm:
                    assert t.idx is not None, "wait on unissued vm token"
                need = max(t.idx for t in it.vm) + 1
                if need > st['vd']:
                    n = min(st['vi'] - need, 63)
                    parts.append(f"vmcnt({n})")
                    st['vd'] = st['vi'] - n
            if it.lg:
                for t in it.lg:
                    assert t.idx is not None, "wait on unissued lds token"
                need = max(t.idx for t in it.lg) + 1
                if need > st['ld']:
                    n = min(st['li'] - need, 15)
                    parts.append(f"lgkmcnt({n})")
                    st['ld'] = st['li'] - n
            if parts:
                out.append(It('i', "s_waitcnt " + " ".join(parts)))
        elif it.k == 'drain':
            parts = []
            if it.vm:
                parts.append("vmcnt(0)")
                st['vd'] = st['vi']
            if it.lg:
                parts.append("lgkmcnt(0)")
                st['ld'] = st['li']
            out.append(It('i', "s_waitcnt " + " ".join(parts)))
        elif it.k == 'fork':
            stack.append([dict(st), None])
        elif it.k == 'else':
            stack[-1][1] = dict(st)
            st = dict(stack[-1][0])
        elif it.k == 'join':
            a = stack.pop()[1]
            assert a == st, f"fork paths differ {a} vs {st}"
        else:
            out.append(it)
    return out


_reg_re = re.compile(r"\b([vas])\[(\d+):(\d+)\]|\b([vas])(\d+)\b|\b(vcc|exec|m0|scc)\b|\b(vcc_lo|vcc_hi|exec_lo|exec_hi)\b")


def regs_of(op):
    r = []
    for m in _reg_re.finditer(op):
        if m.group(1):
            r += [(m.group(1), k) for k in range(int(m.group(2)), int(m.group(3)) + 1)]
        elif m.group(4):
            r.append((m.group(4), int(m.group(5))))
        elif m.group(6):
            r.append((m.group(6), 0))
        elif m.group(7):
            r.append((m.group(7)[:-3], 0))
    return r


def split_ops(text):
    p = text.split(None, 1)
    mn = p[0]
    ops = []
    if len(p) > 1:
        ops = [o.strip() for o in p[1].split(",")]
    return mn, ops


class Dec:
    pass


def decode(text):
    mn, ops = split_ops(text)
    d = Dec()
    d.mn = mn
    d.w = []
    d.r = []
    d.valu = d.mfma = d.trans = d.vmem = d.ds = d.salu = d.dot = d.dpp = d.perm = d.rdlane = d.dma = False
    d.wide_store = []
    d.A = d.B = d.C = []
    d.passes = 0
    base = re.sub(r"_(e32|e64|dpp|sdwa)$", "", mn)
    if mn.startswith("v_mfma"):
        d.mfma = True
        d.passes = 8 if "32x32" in mn else (4 if "16x16" in mn else 2)
        d.w = regs_of(ops[0])
        d.A = regs_of(ops[1])
        d.B = regs_of(ops[2])
        d.C = regs_of(ops[3])
        d.r = d.A + d.B + d.C
    elif mn.startswith("v_"):
        d.valu = True
        d.trans = base in TRANS
        d.dot = mn.startswith("v_dot")
        d.dpp = "row_" in text or "quad_perm" in text or mn.endswith("_dpp")
        if mn.startswith("v_permlane"):
            d.perm = True
            d.w = regs_of(ops[0]) + regs_of(ops[1])
            d.r = list(d.w)
        else:
            d.w = regs_of(ops[0])
            rest = ops[1:]
            if base in ("v_add_co_u32", "v_sub_co_u32", "v_addc_co_u32", "v_subb_co_u32"):
                d.w += regs_of(ops[1])
                rest = ops[2:]
            for o in rest:
                d.r += regs_of(o)
            if base in ("v_fmac_f32", "v_dot2c_f32_bf16"):
                d.r += regs_of(ops[0])
            if base in ("v_readfirstlane_b32", "v_readlane_b32"):
                d.rdlane = True
    elif mn.startswith("buffer_") or mn.startswith("global_"):
        d.vmem = True
        if mn in ("buffer_inv", "buffer_wbl2"):
            pass
        elif text.rstrip().endswith(" lds"):
            d.dma = True
            for o in ops:
                d.r += regs_of(o)
            d.r.append(("m0", 0))
        elif "_load" in mn:
            d.w = regs_of(ops[0])
            for o in ops[1:]:
                d.r += regs_of(o)
        elif "_store" in mn:
            for o in ops:
                d.r += regs_of(o)
            if mn.endswith("x4") or mn.endswith("x3"):
                d.wide_store = regs_of(ops[0] if mn.startswith("buffer") else ops[1])
        else:
            for o in ops:
                d.r += regs_of(o)
            if " sc0" in text:
                d.w = regs_of(ops[0])
    elif mn.startswith("ds_"):
        d.ds = True
        if "read" in mn or "permute" in mn or "swizzle" in mn:
            d.w = regs_of(ops[0])
            for o in ops[1:]:
                d.r += regs_of(o)
        else:
            for o in ops:
                d.r += regs_of(o)
    elif mn.startswith("s_"):
        d.salu = True
        if mn.startswith(("s_cmp", "s_cbranch", "s_branch", "s_waitcnt", "s_barrier", "s_nop", "s_sleep", "s_endpgm", "s_setprio", "s_bitcmp")):
            for o in ops:
                d.r += regs_of(o)
        else:
            d.w = regs_of(ops[0])
            for o in ops[1:]:
                d.r += regs_of(o)
    else:
        raise ValueError("unknown instr " + text)
    return d


def states_of(text):
    if text.startswith("s_nop"):
        return int(text.split()[1], 0) + 1
    return 1


def pad_hazards(items, verbose=False):
    out = []
    hist = []
    pos = 0
    npad = 0
    for it in items:
        if it.k != 'i':
            out.append(it)
            continue
        d = decode(it.text)
        need = 0
        rs, ws = set(d.r), set(d.w)
        for (p, ppos) in hist:
            dist = pos - ppos - 1
            req = 0
            pw = set(p.w)
            if p.valu:
                vw = {x for x in pw if x[0] in "va"}
                sw = {x for x in pw if x[0] in ("s", "vcc")}
                if d.mfma and vw & rs:
                    req = max(req, 2)
                if p.trans and d.valu and not d.trans and vw & rs:
                    req = max(req, 1)
                if d.rdlane and vw & rs:
                    req = max(req, 1)
                if (d.perm or d.dpp) and vw & rs:
                    req = max(req, 2)
                if sw & rs:
                    if d.valu or d.mfma:
                        req = max(req, 2)
                    if d.vmem:
                        req = max(req, 5)
                    if d.salu:
                        req = max(req, 1)
                if p.dot and (vw & (rs | ws)):
                    if not (d.dot and d.mn == p.mn and not (vw & set(d.r[:-len(p.w)]))):
                        req = max(req, 3)
            if p.mfma:
                big = {8: 12, 4: 8, 2: 5}[p.passes]
                ovl = {8: 10, 4: 6, 2: 4}[p.passes]
                war = {8: 7, 4: 3, 2: 1}[p.passes]
                if d.mfma:
                    if pw & (set(d.A) | set(d.B)):
                        req = max(req, big)
                    if pw & set(d.C):
                        if list(p.w) == list(d.C) and p.passes == d.passes:
                            req = max(req, 2 if p.passes == 2 else 0)
                        else:
                            req = max(req, ovl)
                    elif pw & ws:
                        req = max(req, ovl)
                else:
                    if pw & (rs | ws):
                        req = max(req, big)
                    if d.valu and set(p.C) & ws:
                        req = max(req, war)
            if p.salu and ("m0", 0) in pw and d.dma:
                req = max(req, 1)
            if p.wide_store and set(p.wide_store) & ws:
                req = max(req, 2)
            if req > dist:
                need = max(need, req - dist)
        if need > 0:
            npad += need
            if verbose:
                print("pad", need, "before", it.text)
            n = need
            while n > 0:
                k = min(n, 16)
                out.append(It('i', f"s_nop {k-1}"))
                n -= k
            pos += need
        out.append(it)
        hist.append((d, pos))
        pos += states_of(it.text)
        hist = [(p, q) for (p, q) in hist if pos - q <= 24]
    return out, npad


def render(items):
    lines = []
    for it in items:
        if it.k == 'i':
            lines.append("    " + it.text)
        elif it.k == 'l':
            lines.append(it.text + ":")
        elif it.k == 'c':
            lines.append("    ; " + it.text)
    return "\n".join(lines)


def slot_cost(it):
    if it.k == 'w' or it.k == 'drain':
        return 1
    if it.k != 'i':
        return 0
    mn = it.text.split()[0]
    base = re.sub(r"_(e32|e64)$", "", mn)
    if base in TRANS:
        return 2
    return 1


def interleave(main, fill, budget, start=0, mfma_only=True):
    fill = list(fill)
    idx = [k for k, it in enumerate(main) if it.k == 'i' and it.text.startswith("v_mfma")]
    out = []
    nxt = {}
    for n, k in enumerate(idx):
        e = idx[n + 1] if n + 1 < len(idx) else len(main)
        nxt[k] = (n, sum(slot_cost(x) for x in main[k + 1:e]))
    for k, it in enumerate(main):
        out.append(it)
        if k in nxt:
            n, used = nxt[k]
            if n < start:
                continue
            while fill and used + slot_cost(fill[0]) <= budget:
                used += slot_cost(fill[0])
                out.append(fill.pop(0))
    return out, fill
```

```python
import sys, math, struct
from asmlib import *

NAME = "parallel_sum__sliding_block__glu_gated_geglu__prompt"
DEBUG = "--debug" in sys.argv
OUT = [a for a in sys.argv[1:] if not a.startswith("--")]
OUT = OUT[0] if OUT else "k.s"


def f2u(x):
    return struct.unpack("<I", struct.pack("<f", x))[0]


TT = 40960
XN_OFF = 0
Q_OFF = 64 * TT
K_OFF = 2 * 64 * TT
V_OFF = 3 * 64 * TT
ACT_OFF = 4 * 64 * TT
ATT = 272 * 512
W2F_OFF = ACT_OFF + 64 * ATT
FLAG_OFF = W2F_OFF + 8 * 68 * 5120
EPOCH_OFF = FLAG_OFF + 256 * 128
WS_USED = EPOCH_OFF + 4096
STAMP_OFF = 32 << 20
OOB = 0x40000000
TAGC = 0x9E3779B9
EV_LN, EV_QKV, EV_H, EV_O = 0, 1, 2, 3

sWS, sWQ, sGU, sX, sOUT, sST, sRF, sDBG = "s[24:27]", "s[28:31]", "s[32:35]", "s[36:39]", "s[40:43]", "s[44:47]", "s[48:51]", "s[64:67]"
RB, CG, WV, ROT = "s52", "s53", "s54", "s55"
TAG = "s[56:57]"
T0, T1, T2, T3, T4, T5 = "s58", "s59", "s60", "s61", "s62", "s63"
KQ, KGA, KGB, KX = "s68", "s69", "s70", "s71"
QSC, STA, STB, STBASE = "s72", "s73", "s74", "s75"
HB_A, HB_B = "s76", "s77"
WLDS = "s78"
WLDSB = "s79"
XNB = "s80"
CNT = "s81"
STAMP0 = 84
vL, vL16 = "v1", "v2"
vTQ = [[3, 4, 5], [6, 7, 8]]
vTG = [[9, 10, 11], [12, 13, 14]]
vTB = [15, 16]
vDQ = [17, 18, 19, 20]
vDA = [21, 22, 23, 24]
vDB = [25, 26]
vFL = "v27"
vQS = "v28"
vGC = "v29"
vTAG = "v30"
vCNT = "v31"
MOLD, MDIAG = 32, 48
ACCA, ACCB = 64, 128
TMP = 192
aX, aF = 0, 160

nstamp = [0]
stamp_names = []


def stamp(s, name):
    if DEBUG:
        k = nstamp[0]
        assert k < 9
        s.i(f"s_memtime s[{STAMP0+2*k}:{STAMP0+2*k+1}]")
        stamp_names.append(name)
        nstamp[0] += 1


def vr(b, n=1):
    return f"v{b}" if n == 1 else f"v[{b}:{b+n-1}]"


def ar(b, n=1):
    return f"a{b}" if n == 1 else f"a[{b}:{b+n-1}]"


def R(x, n):
    return f"{x[0]}[{x[1]}:{x[1]+n-1}]"


def srd(s, dst, lo, hi, size):
    d = int(dst[2:dst.index(":")])
    s.i(f"s_mov_b32 s{d}, {lo}\ns_mov_b32 s{d+1}, {hi}\ns_mov_b32 s{d+2}, {size}\ns_mov_b32 s{d+3}, 0x20000")


uid = [0]


def poll(s, vaddr, ev, tmp):
    uid[0] += 1
    L = f"L_poll{uid[0]}"
    s.i(f"s_mov_b32 {CNT}, 0")
    s.label(L)
    s.vm(f"buffer_load_dwordx4 {vr(tmp,4)}, {vaddr}, {sWS}, 0 offen offset:{16*ev} sc1")
    s.drain(vm=True, lg=False)
    s.i(f"v_cmp_ne_u64 vcc, {TAG}, {vr(tmp,2)}")
    s.i(f"v_cmp_ne_u64 s[82:83], {TAG}, {vr(tmp+2,2)}")
    s.i("s_nop 1")
    s.i(f"s_or_b64 vcc, vcc, s[82:83]")
    s.i(f"s_cbranch_vccz {L}_done")
    s.i(f"s_add_u32 {CNT}, {CNT}, 1")
    s.i(f"s_cmp_lt_u32 {CNT}, 0x40000")
    s.i(f"s_cbranch_scc1 {L}")
    s.label(L + "_done")


def publish(s, ev, toks):
    s.wait(toks)
    return s.vm(f"buffer_store_dword {vTAG}, {vFL}, {sWS}, 0 offen offset:{16*ev} sc1")


def advance(s_list, reg, step, wrap):
    s_list.append(It('i', f"s_add_u32 {reg}, {reg}, {step}"))
    s_list.append(It('i', f"s_cmp_eq_u32 {reg}, {wrap}"))
    s_list.append(It('i', f"s_cselect_b32 {reg}, 0, {reg}"))


def dma_unit(kind, lds_base):
    groups, toks = [], []
    if kind == 'Q':
        regs, srd_, k, step, wl = vDQ, sWQ, KQ, 64 * 3840, WLDS
    elif kind == 'A':
        regs, srd_, k, step, wl = vDA, sGU, KGA, 64 * 3072, WLDS
    else:
        regs, srd_, k, step, wl = vDB, sGU, KGB, 64 * 3072, WLDSB
    for i, r in enumerate(regs):
        g = []
        if i == 0:
            g.append(It('i', f"s_add_u32 m0, {wl}, {lds_base}"))
        t = Tok('vm')
        off = f" offset:{1024*i}" if i else ""
        g.append(It('i', f"buffer_load_dwordx4 v{r}, {srd_}, {k} offen{off} lds", tok=t))
        toks.append(t)
        if i == len(regs) - 1:
            advance(g, k, step, 10 * step)
        groups.append(g)
    return groups, toks


class Gaps:
    def __init__(self):
        self.pre, self.m, self.post, self.fill = [], [], [], []

    def add(self, pre, m, post):
        self.pre.append(pre)
        self.m.append(m)
        self.post.append(post)
        self.fill.append([])

    def used(self, g):
        u = sum(slot_cost(x) for x in self.post[g]) + sum(slot_cost(x) for x in self.fill[g])
        if g + 1 < len(self.m):
            u += sum(slot_cost(x) for x in self.pre[g + 1])
        return u

    def spread(self, groups, g0, g1, budget=6, every=1):
        groups = list(groups)
        g = g0
        last = g0
        while groups and g < g1:
            c = sum(slot_cost(x) for x in groups[0])
            if self.used(g) + c <= budget or (c > budget - 3 and not self.fill[g]):
                self.fill[g] += groups.pop(0)
                last = g
                if every > 1:
                    g += every
            else:
                g += 1
        return groups, last

    def flat(self, g0, g1):
        o = []
        for g in range(g0, g1):
            o += self.pre[g] + [self.m[g]] + self.post[g] + self.fill[g]
        return o


def single(items):
    return [[x] for x in items]


def build():
    s = S()
    s.i("s_cmp_ge_u32 s2, 256\ns_cbranch_scc1 L_end")
    stamp(s, "start")
    s.i("s_load_dwordx16 s[4:19], s[0:1], 0\ns_load_dwordx4 s[20:23], s[0:1], 64")
    s.i(f"v_and_b32 {vL}, 63, v0\nv_lshrrev_b32 v200, 6, v0\nv_lshlrev_b32 {vL16}, 4, {vL}")
    s.i(f"v_readfirstlane_b32 {WV}, v200")
    s.i(f"s_and_b32 {T0}, s2, 7\ns_lshr_b32 {T1}, s2, 3")
    s.i(f"s_lshr_b32 {T2}, {T0}, 1\ns_lshl_b32 {T2}, {T2}, 2\ns_lshr_b32 {T3}, {T1}, 3\ns_add_u32 {RB}, {T2}, {T3}")
    s.i(f"s_and_b32 {T2}, {T0}, 1\ns_lshl_b32 {T2}, {T2}, 3\ns_and_b32 {T4}, {T1}, 7\ns_add_u32 {CG}, {T2}, {T4}")
    s.i(f"s_mul_i32 {T3}, {T3}, 3\ns_add_u32 {ROT}, {T3}, {T4}\ns_cmp_ge_u32 {ROT}, 10\ns_cselect_b32 {T3}, 10, 0\ns_sub_u32 {ROT}, {ROT}, {T3}")
    s.i(f"v_and_b32 v201, 7, {vL}\nv_lshrrev_b32 v202, 3, {vL}")
    s.i(f"s_lshl_b32 {T0}, {RB}, 7\ns_lshl_b32 {T1}, {CG}, 3\ns_add_u32 {T0}, {T0}, {T1}")
    s.i(f"v_add_u32 v203, {T0}, v201\nv_mul_u32_u24 v203, 1280, v203\nv_lshl_add_u32 v203, v202, 4, v203")
    s.i(f"s_lshl_b32 {T1}, {WV}, 7\nv_add_u32 v203, {T1}, v203")
    s.i(f"s_cmp_ge_u32 {WV}, 2\ns_cselect_b32 {T5}, {OOB}, 0\nv_add_u32 v204, {T5}, v203")
    s.i("s_waitcnt lgkmcnt(0)")
    srd(s, sX, "s4", "s5", 2048 * 1280)
    srd(s, sWS, "s22", "s23", WS_USED)
    XD = 208
    tx = [s.vm(f"buffer_load_dwordx4 {vr(XD,4)}, v203, {sX}, 0 offen"),
          s.vm(f"buffer_load_dwordx4 {vr(XD+4,4)}, v203, {sX}, 0 offen offset:512"),
          s.vm(f"buffer_load_dwordx4 {vr(XD+8,4)}, v204, {sX}, 0 offen offset:1024")]
    s.i(f"s_mov_b32 {T0}, {EPOCH_OFF}")
    tep = s.vm(f"buffer_load_dword {vTAG}, off, {sWS}, {T0} sc1")
    s.i(f"s_lshl_b32 {T0}, {WV}, 8\ns_add_u32 {T0}, {T0}, s2")
    s.i(f"s_mul_i32 {T1}, {T0}, 6554\ns_lshr_b32 {T1}, {T1}, 16")
    s.i(f"s_mul_i32 {T2}, {T1}, 10\ns_sub_u32 {T2}, {T0}, {T2}")
    s.i(f"s_cmp_lt_u32 {T1}, 48\ns_cselect_b32 s48, s16, s8\ns_cselect_b32 s49, s17, s9")
    s.i(f"s_cselect_b32 {T3}, 0, 48\ns_cselect_b32 s50, {1536*1280}, {640*1280}\ns_mov_b32 s51, 0x20000")
    s.i(f"s_sub_u32 {T3}, {T1}, {T3}\ns_mul_i32 {T3}, {T3}, {32*1280}\ns_lshl_b32 {T4}, {T2}, 7\ns_add_u32 {T3}, {T3}, {T4}")
    RFKS, RFCB, RFU = "s82", "s83", "s3"
    s.i(f"s_mov_b32 {RFKS}, {T1}\ns_mov_b32 {RFCB}, {T2}\ns_mov_b32 {RFU}, {T0}")
    s.i(f"v_mul_u32_u24 v205, 1280, v202\nv_lshl_add_u32 v205, v201, 4, v205")
    SLOT = 16384
    s.i(f"s_lshl_b32 {T4}, {WV}, 12\ns_add_u32 {T4}, {T4}, {9*SLOT}")
    trf = []
    for i in range(4):
        s.i(f"s_add_u32 m0, {T4}, {1024*i}")
        s.i(f"s_add_u32 {T5}, {T3}, {8*1280*i}")
        trf.append(s.vm(f"buffer_load_dwordx4 v205, {sRF}, {T5} offen lds"))
    s.i(f"s_cmp_lt_u32 {CG}, 15\ns_cselect_b32 {T0}, {640*3840}, 0\ns_cselect_b32 {T1}, {WS_USED}, 0")
    srd(s, sWQ, "s6", "s7", T0)
    srd(s, sST, "s22", "s23", T1)
    s.i(f"s_cmp_lt_u32 {WV}, 2\ns_cselect_b32 s32, s12, s14\ns_cselect_b32 s33, s13, s15\ns_mov_b32 s34, {640*3072}\ns_mov_b32 s35, 0x20000")
    s.i("v_lshlrev_b32 v206, 1, v202\nv_and_b32 v206, 4, v206\nv_xor_b32 v206, v201, v206\nv_lshlrev_b32 v206, 4, v206")
    s.i(f"s_and_b32 {T0}, {WV}, 1\ns_lshl_b32 {T0}, {T0}, 5\nv_add_u32 v207, {T0}, v202")
    s.i(f"s_lshl_b32 {WLDS}, {WV}, 12\ns_lshl_b32 {WLDSB}, {WV}, 11")
    s.i(f"s_lshr_b32 {T1}, {WV}, 1\ns_lshl_b32 {T1}, {T1}, 7\ns_lshl_b32 {T2}, {CG}, 8\ns_add_u32 {T1}, {T1}, {T2}")
    s.i(f"v_mul_u32_u24 v{vDQ[0]}, 3840, v207\nv_add3_u32 v{vDQ[0]}, v{vDQ[0]}, v206, {T1}")
    for i in range(1, 4):
        s.i(f"v_add_u32 v{vDQ[i]}, {i*(8*3840-1024)}, v{vDQ[0]}")
    s.i(f"s_mul_i32 {KQ}, {ROT}, {64*3840}\ns_mul_i32 {KGA}, {ROT}, {64*3072}\ns_mov_b32 {KGB}, {KGA}\ns_lshl_b32 {KX}, {ROT}, 12")
    unit_tok = {}
    NPRE1 = 1
    for u in range(NPRE1):
        g, t = dma_unit('Q', u * SLOT)
        unit_tok[(0, u)] = t
        for x in g:
            s.ext(x)
    s.i(f"s_lshr_b32 {T1}, {CG}, 1\ns_mul_i32 {T1}, {T1}, 384\ns_and_b32 {T2}, {CG}, 1\ns_lshl_b32 {T3}, {T2}, 8\ns_add_u32 {T3}, {T3}, {T1}")
    s.i(f"v_mul_u32_u24 v{vDA[0]}, 3072, v207\nv_add3_u32 v{vDA[0]}, v{vDA[0]}, v206, {T3}")
    for i in range(1, 4):
        s.i(f"v_add_u32 v{vDA[i]}, {i*(8*3072-1024)}, v{vDA[0]}")
    s.i(f"s_lshl_b32 {T4}, {RB}, 2\ns_add_u32 {T4}, {T4}, {WV}")
    s.i(f"s_mul_i32 {XNB}, {T4}, {TT}")
    s.i(f"s_mul_i32 {T5}, {T4}, {ATT}\ns_add_u32 {T5}, {T5}, {ACT_OFF}")
    s.i(f"s_lshl_b32 {T3}, {T3}, 5\ns_add_u32 {HB_A}, {T5}, {T3}")
    s.i(f"s_lshl_b32 {T2}, {T2}, 6\ns_add_u32 {T2}, {T2}, {T1}\ns_add_u32 {T2}, {T2}, 128")
    s.i(f"s_lshl_b32 {T3}, {T2}, 5\ns_add_u32 {HB_B}, {T5}, {T3}")
    s.i(f"v_lshrrev_b32 v220, 2, {vL}\nv_add_u32 v220, {T0}, v220\nv_mul_u32_u24 v220, 3072, v220\nv_and_b32 v221, 3, {vL}\nv_lshlrev_b32 v221, 4, v221")
    s.i(f"v_add3_u32 v{vDB[0]}, v220, v221, {T2}\nv_add_u32 v{vDB[1]}, {16*3072-1024}, v{vDB[0]}")
    s.i(f"s_lshl_b32 {T1}, {RB}, 4\ns_add_u32 {T1}, {T1}, {CG}\ns_lshl_b32 {T1}, {T1}, 7\ns_lshl_b32 {T2}, {WV}, 2\ns_add_u32 {T1}, {T1}, {T2}\ns_add_u32 {T1}, {T1}, {FLAG_OFF}")
    s.i(f"v_cmp_eq_u32 vcc, 0, {vL}\nv_mov_b32 v220, {T1}\nv_mov_b32 v221, {OOB}\nv_cndmask_b32 {vFL}, v221, v220, vcc")

    ONES, LO1, HI1 = T0, T1, T2
    s.i(f"s_mov_b32 {ONES}, 0x3f803f80\ns_mov_b32 {LO1}, 0x00003f80\ns_mov_b32 {HI1}, 0x3f800000")
    s.i("v_mov_b32 v222, 0\nv_mov_b32 v223, 0\nv_mov_b32 v224, 0\nv_mov_b32 v225, 0")
    for i in range(3):
        s.wait(tx[i])
        for k in range(4):
            r = XD + 4 * i + k
            s.i(f"v_dot2_f32_bf16 v{222+(k&1)}, v{r}, {ONES}, v{222+(k&1)}")
            s.i(f"v_dot2_f32_bf16 v{224+(k&1)}, v{r}, v{r}, v{224+(k&1)}")
    s.i("v_add_f32 v222, v222, v223\nv_add_f32 v223, v224, v225")
    s.i("v_add_f32_dpp v222, v222, v222 row_ror:8 row_mask:0xf bank_mask:0xf")
    s.i("v_add_f32_dpp v223, v223, v223 row_ror:8 row_mask:0xf bank_mask:0xf")
    for sw in ("v_permlane16_swap_b32", "v_permlane32_swap_b32"):
        s.i("v_mov_b32 v224, v222\nv_mov_b32 v225, v223")
        s.i(f"{sw} v222, v224\n{sw} v223, v225")
        s.i("v_add_f32 v222, v222, v224\nv_add_f32 v223, v223, v225")
    LNX = 8 * SLOT
    s.i(f"v_lshlrev_b32 v224, 5, v201\nv_add_u32 v224, {LNX}, v224\ns_lshl_b32 {T3}, {WV}, 3\nv_add_u32 v225, {T3}, v224")
    tw = s.ds("ds_write_b64 v225, v[222:223]")
    s.wait(tw)
    s.i("s_barrier")
    t1 = s.ds("ds_read_b128 v[228:231], v224")
    t2 = s.ds("ds_read_b128 v[232:235], v224 offset:16")
    s.wait(t1, t2)
    s.i("v_add_f32 v228, v228, v230\nv_add_f32 v229, v229, v231\nv_add_f32 v232, v232, v234\nv_add_f32 v233, v233, v235")
    s.i("v_add_f32 v228, v228, v232\nv_add_f32 v229, v229, v233")
    s.i(f"v_mul_f32 v228, {hex(f2u(1.0/640))}, v228\nv_mul_f32 v229, {hex(f2u(1.0/640))}, v229")
    s.i("v_fma_f32 v229, -v228, v228, v229\nv_max_f32 v229, 0, v229")
    s.i("v_cvt_pk_bf16_f32 v230, v228, v229")
    s.i("v_lshlrev_b32 v228, 16, v230\nv_and_b32 v229, 0xffff0000, v230")
    s.i(f"v_add_f32 v229, {hex(f2u(1e-5))}, v229\nv_cvt_pk_bf16_f32 v229, v229, v229\nv_lshlrev_b32 v229, 16, v229")
    s.i("v_sqrt_f32 v229, v229\nv_cvt_pk_bf16_f32 v229, v229, v229\nv_lshlrev_b32 v229, 16, v229\nv_rcp_f32 v229, v229")
    s.i("v_sub_f32 v228, 0, v228")
    s.i(f"s_lshl_b32 {T3}, {RB}, 2\ns_lshr_b32 {T4}, {CG}, 2\ns_add_u32 {T3}, {T3}, {T4}\ns_mul_i32 {T3}, {T3}, {TT}")
    s.i(f"s_and_b32 {T4}, {CG}, 3\ns_lshl_b32 {T4}, {T4}, 7\ns_add_u32 {T3}, {T3}, {T4}\ns_lshl_b32 {T4}, {WV}, 12\ns_add_u32 {T3}, {T3}, {T4}")
    s.i(f"v_lshlrev_b32 v226, 9, v202\nv_lshl_add_u32 v226, v201, 4, v226\nv_add_u32 v226, {T3}, v226")
    s.i(f"s_cmp_ge_u32 {WV}, 2\ns_cselect_b32 {T5}, {OOB}, 32768\nv_add_u32 v227, {T5}, v226\ns_movk_i32 {T4}, 0x4000")
    tst = []
    for i in range(3):
        for k in range(4):
            r = XD + 4 * i + k
            s.i(f"v_dot2_f32_bf16 v{236+2*k}, v{r}, {LO1}, v228\nv_dot2_f32_bf16 v{237+2*k}, v{r}, {HI1}, v228")
        for k in range(4):
            s.i(f"v_cvt_pk_bf16_f32 v{XD+4*i+k}, v{236+2*k}, v{237+2*k}")
        for k in range(4):
            r = XD + 4 * i + k
            s.i(f"v_lshlrev_b32 v{236+2*k}, 16, v{r}\nv_and_b32 v{237+2*k}, 0xffff0000, v{r}")
        for k in range(8):
            s.i(f"v_mul_f32 v{236+k}, v{236+k}, v229")
        for k in range(4):
            s.i(f"v_cvt_pk_bf16_f32 v{XD+4*i+k}, v{236+2*k}, v{237+2*k}")
        a, so = (("v226", "0"), ("v226", T4), ("v227", "0"))[i]
        tst.append(s.vm(f"buffer_store_dwordx4 {vr(XD+4*i,4)}, {a}, {sWS}, {so} offen sc1"))
    s.wait(tep)
    s.i(f"v_add_u32 {vTAG}, {hex(TAGC)}, {vTAG}")
    s.i(f"v_readfirstlane_b32 s56, {vTAG}\ns_nop 1\ns_mov_b32 s57, s56")
    s.i(f"v_bfe_u32 v236, {vL}, 2, 2\nv_and_b32 v237, 3, {vL}\nv_bfe_u32 v238, {vL}, 4, 1\nv_lshrrev_b32 v239, 5, {vL}")
    s.i("v_lshrrev_b32 v240, 1, v237\nv_and_b32 v241, 1, v237\nv_lshl_or_b32 v240, v241, 1, v240")
    s.i("v_lshl_add_u32 v242, v239, 3, v236")
    s.i("v_lshlrev_b32 v243, 7, v242\nv_lshl_add_u32 v243, v238, 5, v243")
    s.i("v_lshrrev_b32 v244, 1, v236\nv_lshlrev_b32 v244, 6, v244\nv_add_u32 v243, v243, v244")
    s.i(f"v_lshl_add_u32 v{vTG[0][0]}, v240, 3, v243\nv_xor_b32 v{vTG[1][0]}, 64, v{vTG[0][0]}")
    s.i(f"s_cmp_ge_u32 {CG}, 10\ns_cselect_b64 vcc, -1, 0\ns_nop 1\nv_cndmask_b32 v245, v240, v237, vcc")
    s.i(f"v_lshl_add_u32 v{vTQ[0][0]}, v245, 3, v243\nv_xor_b32 v{vTQ[1][0]}, 64, v{vTQ[0][0]}")
    for T in range(2):
        for wdw in (1, 2):
            s.i(f"v_add_u32 v{vTG[T][wdw]}, {65536*wdw}, v{vTG[T][0]}\nv_add_u32 v{vTQ[T][wdw]}, {65536*wdw}, v{vTQ[T][0]}")
    s.i("v_lshlrev_b32 v243, 6, v242\nv_lshl_add_u32 v243, v238, 5, v243")
    s.i(f"v_lshl_add_u32 v{vTB[0]}, v240, 3, v243\nv_add_u32 v{vTB[1]}, 65536, v{vTB[0]}")
    publish(s, EV_LN, tst)
    stamp(s, "ln_pub")
    for u in range(NPRE1, 4):
        g, t = dma_unit('Q', u * SLOT)
        unit_tok[(0, u)] = t
        for x in g:
            s.ext(x)
    s.i(f"v_lshrrev_b32 v242, 4, {vL}\nv_lshl_add_u32 v242, v242, 3, v236\nv_lshlrev_b32 v242, 7, v242\nv_lshl_add_u32 v242, v237, 3, v242")
    s.i(f"s_lshl_b32 {T4}, {WV}, 12\ns_add_u32 {T4}, {T4}, {9*SLOT}\nv_add_u32 v242, {T4}, v242")
    s.i(f"s_cmp_lt_u32 {RFU}, 680\ns_cselect_b32 {T5}, 0, {OOB}\nv_add_u32 v243, {T5}, {vL16}")
    s.wait(trf)
    rt = []
    for t16 in range(4):
        for j in range(2):
            rt.append(s.ds(f"ds_read_b64_tr_b16 {vr(208+4*t16+2*j,2)}, v242 offset:{32*t16+512*j}"))
    trs = []
    for t16 in range(4):
        s.i(f"s_lshl_b32 {T0}, {RFCB}, 2\ns_add_u32 {T0}, {T0}, {t16}\ns_mul_i32 {T1}, {T0}, 205\ns_lshr_b32 {T1}, {T1}, 10")
        s.i(f"s_mul_i32 {T2}, {T1}, 5\ns_sub_u32 {T2}, {T0}, {T2}\ns_mul_i32 {T1}, {T1}, 68\ns_add_u32 {T1}, {T1}, {RFKS}")
        s.i(f"s_mul_i32 {T1}, {T1}, 5\ns_add_u32 {T1}, {T1}, {T2}\ns_lshl_b32 {T1}, {T1}, 10\ns_add_u32 {T1}, {T1}, {W2F_OFF}")
        s.wait(rt[2 * t16 + 1])
        trs.append(s.vm(f"buffer_store_dwordx4 {vr(208+4*t16,4)}, v243, {sWS}, {T1} offen sc1"))
    s.i(f"v_and_b32 v244, 31, {vL}\nv_lshlrev_b32 v245, 2, v239\nv_sub_u32 v244, v244, v245\nv_mov_b32 v246, {hex(f2u(-1e30))}")
    for g in range(4):
        for e in range(4):
            k = 8 * g + e
            s.i(f"v_cmp_le_i32 vcc, {k}, v244")
            s.i(f"v_cndmask_b32 v{MDIAG+4*g+e}, v246, 0, vcc" if False else f"v_cndmask_b32_e64 v{MDIAG+4*g+e}, v246, 0, vcc")
            s.i(f"v_cndmask_b32_e64 v{MOLD+4*g+e}, 0, v246, vcc")
    c_q = math.log2(math.e) / math.sqrt(20.0)
    s.i(f"s_cmp_lt_u32 {CG}, 5\ns_cselect_b32 {QSC}, {hex(f2u(c_q))}, 1.0")
    s.i(f"s_cmp_ge_u32 {CG}, 10\ns_cselect_b32 {STA}, 512, 2048\ns_cselect_b32 {STB}, 20480, 1024\ns_cselect_b32 {T0}, 2048, 8192\ns_cselect_b32 {T1}, 10240, 512")
    s.i(f"s_mul_i32 {T2}, {CG}, 205\ns_lshr_b32 {T2}, {T2}, 10\ns_mul_i32 {T3}, {T2}, 5\ns_sub_u32 {T3}, {CG}, {T3}\ns_mul_i32 {T3}, {T3}, {T0}")
    s.i(f"s_mul_i32 {T2}, {T2}, {64*TT}\ns_add_u32 {T2}, {T2}, {T3}\ns_add_u32 {T2}, {T2}, {XNB}\ns_add_u32 {STBASE}, {T2}, {Q_OFF}")
    s.i(f"v_and_b32 v244, 31, {vL}\nv_lshlrev_b32 v244, 4, v244\nv_mul_lo_u32 v245, v239, {T1}\nv_add_u32 {vQS}, v244, v245")
    ga = -2.0 * math.log2(math.e) * math.sqrt(2.0 / math.pi)
    gb = ga * 0.044715
    s.i(f"v_mov_b32 {vGC}, {hex(f2u(gb))}")
    srd(s, sDBG, "s20", "s21", 256)
    srd(s, sOUT, "s18", "s19", 2048 * 1280)
    for u in range(4, 8):
        g, t = dma_unit('Q', u * SLOT)
        unit_tok[(0, u)] = t
        for x in g:
            s.ext(x)
    vPG = "v247"
    s.i(f"s_lshl_b32 {T0}, {RB}, 11\ns_add_u32 {T0}, {T0}, {FLAG_OFF}\nv_and_b32 {vPG}, 15, {vL}\nv_lshlrev_b32 {vPG}, 7, {vPG}\nv_add_u32 {vPG}, {T0}, {vPG}")
    poll(s, vPG, EV_LN, 248)
    stamp(s, "ln_ready")

    xt = []
    xgroups = []
    for ks in range(40):
        g = []
        if ks % 4 == 0:
            g.append(It('i', f"s_add_u32 {T5}, {KX}, {XNB}"))
        t = Tok('vm')
        xt.append(t)
        off = f" offset:{1024*(ks%4)}" if ks % 4 else ""
        g.append(It('i', f"buffer_load_dwordx4 {ar(aX+4*ks,4)}, {vL16}, {sWS}, {T5} offen{off} sc1", tok=t))
        if ks % 4 == 3:
            advance(g, KX, 4096, 40960)
        xgroups.append(g)
    NX0 = 8
    for g in xgroups[:NX0]:
        s.ext(g)
    passes = [dict(kind='Q', nt=4, acc=ACCA), dict(kind='A', nt=4, acc=ACCB), dict(kind='B', nt=2, acc=ACCA)]

    def unit_base(p, st):
        return st * SLOT if p < 2 else st * 8192

    def frag_reads(p, ks, t):
        st, j = ks // 4, ks % 4
        base = unit_base(p, st)
        dst = aF + 16 * (ks % 2) + 4 * t
        o, toks = [], []
        for jj in range(2):
            if p < 2:
                a = base + (t // 2) * 8192 + (16 * j + 4 * jj) * 128
                reg = (vTQ if p == 0 else vTG)[t % 2][a // 65536]
            else:
                a = base + t * 4096 + (16 * j + 4 * jj) * 64
                reg = vTB[a // 65536]
            tk = Tok('lg')
            toks.append(tk)
            o.append(It('i', f"ds_read_b64_tr_b16 {ar(dst+2*jj,2)}, v{reg} offset:{a % 65536}", tok=tk))
        return o, toks

    def W(*toks):
        toks = [t for x in toks for t in (x if isinstance(x, list) else [x])]
        return It('w', vm=[t for t in toks if t.kind == 'vm'], lg=[t for t in toks if t.kind == 'lg'])

    dma_groups = {}
    for u in range(8, 10):
        dma_groups[(0, u)], unit_tok[(0, u)] = dma_unit('Q', u * SLOT)
    for u in range(10):
        dma_groups[(1, u)], unit_tok[(1, u)] = dma_unit('A', u * SLOT)
    for u in range(10):
        dma_groups[(2, u)], unit_tok[(2, u)] = dma_unit('B', u * 8192)

    def make_gaps(swap):
        G = Gaps()
        ft = {}
        head = []
        head.append(W(unit_tok[(0, 0)]))
        head.append(It('i', "s_barrier"))
        for t in range(4):
            o, tk = frag_reads(0, 0, t)
            head += o
            ft[(0, 0, t)] = tk
        gap_of_stage = {}
        for p, P in enumerate(passes):
            for ks in range(40):
                np_, nks = (p, ks + 1) if ks < 39 else (p + 1, 0)
                nnt = passes[np_]['nt'] if np_ < 3 else 0
                newstage = np_ < 3 and nks % 4 == 0
                for t in range(P['nt']):
                    pre = []
                    wt = list(ft[(p, ks, t)])
                    if t == 0 and p == 0:
                        wt.append(xt[ks])
                    if t == 0 and newstage:
                        for tt_ in range(P['nt']):
                            wt += ft[(p, ks, tt_)]
                    pre.append(W(wt))
                    acc = vr(P['acc'] + 16 * t, 16)
                    A, B = ar(aF + 16 * (ks % 2) + 4 * t, 4), ar(aX + 4 * ks, 4)
                    if swap and p == 0:
                        A, B = B, A
                    m = It('i', f"v_mfma_f32_32x32x16_bf16 {acc}, {A}, {B}, {acc if ks else 0}")
                    post = []
                    if t == 0 and newstage:
                        post.append(W(unit_tok[(np_, nks // 4)]))
                        post.append(It('i', "s_barrier"))
                        gap_of_stage[(np_, nks // 4)] = len(G.m)
                    tl = [x for x in range(nnt) if x * P['nt'] // nnt == t] if nnt else []
                    if nnt and nnt < P['nt']:
                        tl = [t] if t < nnt else []
                    for x in tl:
                        o, tk = frag_reads(np_, nks, x)
                        post += o
                        ft[(np_, nks, x)] = tk
                    G.add(pre, m, post)
        return head, G, gap_of_stage

    def clone_groups(groups):
        return [[It(x.k, x.text, tok=x.tok, vm=x.vm, lg=x.lg) for x in g] for g in groups]

    def qkv_fill(G, gos):
        left, last = G.spread(clone_groups(xgroups[NX0:]), 0, 160)
        assert not left
        g0 = max(last + 1, gos[(0, 1)] + 1)
        q = []
        order = [((0, 8), gos[(0, 1)]), ((0, 9), gos[(0, 1)])] + [((1, u), gos[(0, u + 1)]) for u in range(9)]
        for key, gmin in order:
            g0 = max(g0, gmin + 1)
            left, last = G.spread(clone_groups(dma_groups[key]), g0, 160, every=2)
            assert not left, key
            g0 = last + 1
        return g0

    tcnt = Tok('vm')

    def cnt_items():
        return [It('i', f"v_mov_b32 {vCNT}, 1"),
                It('i', f"s_cmp_eq_u32 {WV}, 0"), It('i', f"s_cselect_b32 {T0}, 0, {OOB}"),
                It('i', f"v_lshlrev_b32 v192, 12, {vL}"), It('i', f"v_add_u32 v192, {T0}, v192"),
                It('i', f"buffer_atomic_add {vCNT}, v192, {sDBG}, 0 offen sc0 sc1", tok=tcnt)]

    head, G, gos = make_gaps(False)
    headV, GV, gosV = make_gaps(True)
    for GG, gg in ((G, gos), (GV, gosV)):
        GG.fill[gg[(0, 1)] + 1] += cnt_items()
        qkv_fill(GG, gg)
    s.i(f"s_cmp_ge_u32 {CG}, 10\ns_cbranch_scc1 L_vpath")
    s.fork()
    s.ext(headV if False else head)
    s.ext(G.flat(0, 160))
    s.i("s_branch L_gua")
    s.els()
    s.label("L_vpath")
    s.i("s_nop 1")
    s.ext(headV)
    s.ext(GV.flat(0, 160))
    s.i("s_nop 0")
    s.join()
    s.label("L_gua")
    G, gos = GV, gosV
    ep = S()
    qst = []
    for t in range(4):
        for i in range(2):
            b = ACCA + 16 * t + 8 * i
            d = TMP + 4 * ((2 * t + i) % 4)
            for k in range(8):
                ep.i(f"v_mul_f32 v{b+k}, {QSC}, v{b+k}")
            for k in range(4):
                ep.i(f"v_cvt_pk_bf16_f32 v{d+k}, v{b+2*k}, v{b+2*k+1}")
            if i == 0:
                ep.i(f"s_mul_i32 {T0}, {STA}, {t}\ns_add_u32 {T0}, {T0}, {STBASE}")
            else:
                ep.i(f"s_add_u32 {T0}, {T0}, {STB}")
            qst.append(ep.vm(f"buffer_store_dwordx4 {vr(d,4)}, {vQS}, {sST}, {T0} offen sc1"))
    if DEBUG:
        st = S(); stamp(st, "qkv_done"); G.fill[160] += st.a
    left, last = G.spread(dma_groups[(1, 9)], 161, 320, every=2)
    assert not left
    left, last = G.spread(single(ep.a), 163, 320)
    assert not left
    pub = S()
    publish(pub, EV_QKV, qst)
    G.fill[last + 40] += pub.a
    g0 = 161
    for u in range(10):
        gmin = gos[(1, u // 2 + 1)]
        g0 = max(g0, gmin + 1)
        left, last = G.spread(dma_groups[(2, u)], g0, 320, every=2)
        assert not left
        g0 = last + 1

    def gelu(accg, accu, hb, tmp):
        e = S()
        toks = []
        for i in range(2):
            for half in range(2):
                ks_ = [8 * i + 4 * half + k for k in range(4)]
                tm = [tmp + 8 + k for k in range(4)]
                for k, r in zip(tm, ks_):
                    e.i(f"v_mul_f32 v{k}, v{accg+r}, v{accg+r}")
                for k, r in zip(tm, ks_):
                    e.i(f"v_fmaak_f32 v{k}, v{k}, {vGC}, {hex(f2u(ga))}")
                for k, r in zip(tm, ks_):
                    e.i(f"v_mul_f32 v{k}, v{k}, v{accg+r}")
                for k, r in zip(tm, ks_):
                    e.i(f"v_exp_f32 v{k}, v{k}")
                    e.i(f"v_mul_f32 v{accu+r}, v{accg+r}, v{accu+r}")
                for k, r in zip(tm, ks_):
                    e.i(f"v_add_f32 v{k}, 1.0, v{k}")
                for k, r in zip(tm, ks_):
                    e.i(f"v_rcp_f32 v{k}, v{k}")
                for k, r in zip(tm, ks_):
                    e.i(f"v_mul_f32 v{accu+r}, v{accu+r}, v{k}")
                d = tmp + 4 * i + 2 * half
                e.i(f"v_cvt_pk_bf16_f32 v{d}, v{accu+ks_[0]}, v{accu+ks_[1]}")
                e.i(f"v_cvt_pk_bf16_f32 v{d+1}, v{accu+ks_[2]}, v{accu+ks_[3]}")
            toks.append(e.vm(f"buffer_store_dwordx4 {vr(tmp+4*i,4)}, {vL16}, {sWS}, {hb[0]} offen offset:{hb[1]+1024*i} sc1"))
        return e, toks

    e1, h1 = gelu(ACCB, ACCB + 32, (HB_A, 0), TMP)
    e2, h2 = gelu(ACCB + 16, ACCB + 48, (HB_A, 2048), TMP + 16)
    e3, h3 = gelu(ACCA, ACCA + 16, (HB_B, 0), TMP)
    if DEBUG:
        st = S(); stamp(st, "gua_done"); G.fill[320] += st.a
    left, last = G.spread(single(e1.a + e2.a), 323, 400)
    s.ext(G.flat(160, 400))
    for g in left:
        s.ext(g)
    s.ext(e3)
    stamp(s, "gu_done")

    AB = 5 * SLOT
    KL, VL = AB, AB + 30720
    s.i(f"v_min_u32 v200, 47, {vL}\ns_lshl_b32 {T0}, {RB}, 4\ns_sub_u32 {T0}, {T0}, 32\nv_add_u32 v200, {T0}, v200\nv_max_i32 v200, 0, v200")
    s.i(f"v_lshlrev_b32 v200, 7, v200\nv_add_u32 v200, {FLAG_OFF}, v200")
    vSK, vSV = [204, 205, 206, 207, 208], [209, 210, 211, 212, 213]
    s.i(f"s_mul_i32 {T1}, {CG}, 2560\ns_mul_i32 {T2}, {CG}, 640")
    for i in range(5):
        s.i(f"v_add_u32 v214, {64*i}, {vL}\nv_cmp_le_u32 vcc, 160, v214\nv_mov_b32 v215, 160\nv_mov_b32 v216, {TT}")
        s.i("v_cndmask_b32_e64 v215, 0, v215, vcc\nv_cndmask_b32_e64 v216, 0, v216, vcc\nv_sub_u32 v214, v214, v215")
        s.i(f"v_lshl_add_u32 v{vSK[i]}, v214, 4, v216\nv_add_u32 v{vSK[i]}, {T1}, v{vSK[i]}")
        s.i("v_mul_u32_u24 v217, 205, v214\nv_lshrrev_b32 v217, 13, v217")
        s.i("v_mul_u32_u24 v218, 40, v217\nv_sub_u32 v218, v214, v218")
        s.i("v_mul_u32_u24 v217, 10240, v217\nv_lshl_add_u32 v217, v218, 4, v217")
        s.i(f"v_add3_u32 v{vSV[i]}, v217, v216, {T2}")
    poll(s, "v200", EV_QKV, 220)
    tH = publish(s, EV_H, h1 + h2 + h3)
    stg = []
    s.i(f"s_mov_b32 s44, s22\ns_mov_b32 s45, s23\ns_mov_b32 s47, 0x20000")
    s.i(f"s_cmp_ge_u32 {WV}, 2\ns_cselect_b64 vcc, -1, 0\ns_cselect_b32 {T3}, {V_OFF}, {K_OFF}\ns_cselect_b32 {T4}, {VL}, {KL}")
    for i in range(5):
        s.i(f"v_cndmask_b32 v{vSK[i]}, v{vSK[i]}, v{vSV[i]}, vcc")
    s.i(f"s_and_b32 {T0}, {WV}, 1\ns_mul_i32 {T0}, {T0}, 3")
    for b in range(3):
        s.i(f"s_add_u32 {T1}, {T0}, {b}\ns_lshl_b32 {T2}, {RB}, 1\ns_add_u32 {T2}, {T2}, {T1}\ns_sub_u32 {T2}, {T2}, 4")
        s.i(f"s_cmp_ge_i32 {T2}, 0\ns_cselect_b32 s46, {WS_USED}, 0\ns_cselect_b32 {T2}, {T2}, 0")
        s.i(f"s_mul_i32 {T2}, {T2}, {2*TT}\ns_add_u32 {T2}, {T2}, {T3}\ns_mul_i32 {T1}, {T1}, 5120\ns_add_u32 {T1}, {T1}, {T4}")
        for i in range(5):
            s.i(f"s_add_u32 m0, {T1}, {1024*i}")
            stg.append(s.vm(f"buffer_load_dwordx4 v{vSK[i]}, {sST}, {T2} offen sc1 lds"))
    QF = [144, 150]
    s.i(f"s_mul_i32 {T0}, {CG}, 2560\ns_add_u32 {T0}, {T0}, {XNB}\ns_add_u32 {T0}, {T0}, {Q_OFF}")
    s.i(f"v_cmp_gt_u32 vcc, 32, {vL}\nv_mov_b32 v214, {OOB}\nv_cndmask_b32 v214, v214, {vL16}, vcc")
    vLOW = "v214"
    tq = [s.vm(f"buffer_load_dwordx4 {vr(QF[0],4)}, {vL16}, {sWS}, {T0} offen sc1"),
          s.vm(f"buffer_load_dwordx2 {vr(QF[0]+4,2)}, {vLOW}, {sWS}, {T0} offen offset:1024 sc1"),
          s.vm(f"buffer_load_dwordx4 {vr(QF[1],4)}, {vL16}, {sWS}, {T0} offen offset:1536 sc1"),
          s.vm(f"buffer_load_dwordx2 {vr(QF[1]+4,2)}, {vLOW}, {sWS}, {T0} offen offset:1032 sc1")]
    s.i(f"v_lshrrev_b32 v215, 1, {vL}\ns_lshl_b32 {T1}, {RB}, 2\ns_sub_u32 {T1}, {T1}, 8\nv_add_u32 v215, {T1}, v215")
    s.i("v_cmp_le_i32 vcc, 0, v215\nv_mov_b32 v216, 0x3f803f80\nv_cndmask_b32_e64 v216, 0, v216, vcc\nv_mov_b32 v217, v216\nv_mov_b32 v218, v216\nv_mov_b32 v219, v216")
    s.i(f"v_min_u32 v215, 24, {vL}\nv_mul_u32_u24 v215, 1280, v215")
    tones = s.ds("ds_write_b128 v215, v[216:219]")
    vKA, vKT, vVA = "v200", "v201", [202, 203]
    s.i(f"s_mul_i32 {T1}, {WV}, 2560\ns_add_u32 {T2}, {T1}, {KL}\nv_add_u32 {vKA}, {T2}, {vL16}")
    s.i(f"v_and_b32 v220, 31, {vL}\nv_lshlrev_b32 {vKT}, 4, v220\nv_add_u32 {vKT}, {T2}, {vKT}")
    s.i("v_bfe_u32 v221, v220, 2, 1\nv_bfe_u32 v222, v220, 3, 1\nv_and_b32 v223, 3, v220")
    s.i("v_lshl_add_u32 v224, v221, 3, v223\nv_lshl_add_u32 v224, v222, 2, v224")
    s.i(f"v_lshrrev_b32 v225, 5, {vL}\nv_mul_u32_u24 v225, 640, v225\ns_add_u32 {T2}, {T1}, {VL}\nv_add_u32 v225, {T2}, v225")
    for hd in range(2):
        s.i(f"v_add_u32 v226, {24*hd}, v224\nv_add_u32 v227, {16+4*hd}, v223\nv_cmp_gt_u32 vcc, 16, v220\nv_cndmask_b32 v226, v227, v226, vcc")
        s.i(f"v_lshl_add_u32 v226, v226, 4, v225\nv_mov_b32 v227, {T1}\nv_cmp_gt_u32 vcc, 20, v220\nv_cndmask_b32 v{vVA[hd]}, v227, v226, vcc")
    s.wait(stg, tones)
    s.i("s_barrier")
    stamp(s, "att_start")
    SB = [64, 80]
    PB = 96
    OB = [112, 128]
    KF = [156, 162]
    VF = [168, 176]
    kt, vt = {}, {}

    def kload(o, i):
        hd, j = divmod(i, 9)
        b = KF[i % 2]
        kt[i] = [o.ds(f"ds_read_b128 {vr(b,4)}, {vKA} offset:{j*2560 + hd*1536}"),
                 o.ds(f"ds_read_b64 {vr(b+4,2)}, {vKT} offset:{j*2560 + 1024 + 8*hd}")]

    def vload(o, i):
        hd, j = divmod(i, 9)
        b = VF[i % 2]
        vt[i] = [o.ds(f"ds_read_b128 {vr(b+4*c,4)}, v{vVA[hd]} offset:{j*2560 + c*1280}") for c in range(2)]

    def smm(o, i, part):
        hd, j = divmod(i, 9)
        sb = vr(SB[i % 2], 16)
        if part == 0:
            c = vr(MOLD, 16) if j == 0 else (vr(MDIAG, 16) if j == 8 else "0")
            o.wait(kt[i][0])
            o.i(f"v_mfma_f32_32x32x16_bf16 {sb}, {vr(KF[i%2],4)}, {vr(QF[hd],4)}, {c}")
        else:
            o.wait(kt[i][1])
            o.i(f"v_mfma_f32_32x32x8_bf16 {sb}, {vr(KF[i%2]+4,2)}, {vr(QF[hd]+4,2)}, {sb}")

    def pv(o, i, c):
        hd, j = divmod(i, 9)
        ob = vr(OB[hd], 16)
        o.wait(vt[i][c])
        o.i(f"v_mfma_f32_32x32x16_bf16 {ob}, {vr(VF[i%2]+4*c,4)}, {vr(PB+4*c,4)}, {'0' if (j == 0 and c == 0) else ob}")

    at = S()
    kload(at, 0)
    kload(at, 1)
    vload(at, 0)
    at.wait(tq)
    smm(at, 0, 0)
    smm(at, 0, 1)
    for i in range(18):
        sb = SB[i % 2]

        def ex(a, b):
            for k in range(a, b):
                at.i(f"v_exp_f32 v{sb+k}, v{sb+k}")

        def cv(a, b):
            for k in range(a, b):
                at.i(f"v_cvt_pk_bf16_f32 v{PB+k}, v{sb+2*k}, v{sb+2*k+1}")
        if i + 1 < 18:
            smm(at, i + 1, 0)
        ex(0, 3)
        if i > 0:
            pv(at, i - 1, 1)
        if i + 1 < 18:
            vload(at, i + 1)
        ex(3, 6)
        cv(0, 2)
        if i + 1 < 18:
            smm(at, i + 1, 1)
        if i + 2 < 18:
            kload(at, i + 2)
        ex(6, 9)
        cv(2, 4)
        ex(9, 11)
        pv(at, i, 0)
        ex(11, 16)
        cv(4, 8)
    pv(at, 17, 1)

    JN, TB = T4, T5
    W2B, ACB, RT2 = "s68", "s69", "s70"
    w2regs = [('a', 4 * k) for k in range(64)] + [('v', 172 + 4 * k) for k in range(21)]
    pre2 = S()
    pre2.i(f"s_and_b32 {T0}, {CG}, 7\ns_mul_i32 {W2B}, {T0}, {68*5120}\ns_add_u32 {W2B}, {W2B}, {W2F_OFF}")
    pre2.i(f"s_lshr_b32 {T1}, {CG}, 3\ns_lshl_b32 {T2}, {RB}, 1\ns_add_u32 {T1}, {T1}, {T2}\ns_mul_i32 {ACB}, {T1}, {2*ATT}\ns_add_u32 {ACB}, {ACB}, {ACT_OFF}")
    pre2.i(f"v_add_u32 v3, 4096, {vL16}")
    pre2.i(f"s_mov_b32 {CNT}, 0")
    pre2.label("L_w2poll")
    pre2.vm(f"buffer_load_dword v4, off, {sDBG}, 0 sc1")
    pre2.drain(vm=True, lg=False)
    pre2.i(f"v_cmp_ne_u32 vcc, 0x100, v4\ns_cbranch_vccz L_w2ok\ns_add_u32 {CNT}, {CNT}, 1\ns_cmp_lt_u32 {CNT}, 0x40000\ns_cbranch_scc1 L_w2poll")
    pre2.label("L_w2ok")
    pre2.i(f"v_cmp_eq_u32 vcc, 0xff, {vCNT}\nv_mov_b32 v4, {OOB}\nv_mov_b32 v5, {EPOCH_OFF}\nv_cndmask_b32 v4, v4, v5, vcc")
    pre2.vm(f"buffer_store_dword {vTAG}, v4, {sWS}, 0 offen sc1")

    def ks_scalar(o, i, dst):
        if i < 12:
            o.append(It('i', f"s_add_u32 {dst}, {ROT}, {i}"))
            o.append(It('i', f"s_cmp_ge_u32 {dst}, 12"))
            o.append(It('i', f"s_cselect_b32 {RT2}, 12, 0"))
            o.append(It('i', f"s_sub_u32 {dst}, {dst}, {RT2}"))
            o.append(It('i', f"s_mul_i32 {RT2}, {WV}, 12"))
            o.append(It('i', f"s_add_u32 {dst}, {dst}, {RT2}"))
        else:
            o.append(It('i', f"s_mul_i32 {dst}, {WV}, 5"))
            o.append(It('i', f"s_add_u32 {dst}, {dst}, {48 + i - 12}"))

    w2g, w2t = [], {}
    for i in range(17):
        for t in range(5):
            g = []
            if t == 0:
                ks_scalar(g, i, T0)
                g.append(It('i', f"s_mul_i32 {T0}, {T0}, 5120"))
                g.append(It('i', f"s_add_u32 {T0}, {T0}, {W2B}"))
            tk = Tok('vm')
            w2t[(i, t)] = tk
            va, off = (vL16, 1024 * t) if t < 4 else ("v3", 0)
            g.append(It('i', f"buffer_load_dwordx4 {R(w2regs[5*i+t],4)}, {va}, {sWS}, {T0} offen offset:{off} sc1", tok=tk))
            w2g.append(g)
    s.ext(pre2)
    NW2_ATT = 64
    merged = []
    q = list(w2g[:NW2_ATT])
    for it in at.a:
        merged.append(it)
        if it.k == 'i' and it.text.startswith("v_mfma") and q:
            merged += q.pop(0)
    assert not q
    s.ext(merged)
    s.i(f"s_mul_i32 {T1}, {CG}, 2560\ns_lshl_b32 {T2}, {RB}, 2\ns_add_u32 {T2}, {T2}, {WV}\ns_mul_i32 {T2}, {T2}, {ATT}\ns_add_u32 {T1}, {T1}, {T2}\ns_add_u32 {T1}, {T1}, {ACT_OFF + 192*512}")
    ost = []
    for hd in range(2):
        ob = OB[hd]
        s.i(f"v_rcp_f32 v{ob+12}, v{ob+12}")
        for k in range(12):
            s.i(f"v_mul_f32 v{ob+k}, v{ob+k}, v{ob+12}")
        for k in range(4):
            s.i(f"v_cvt_pk_bf16_f32 v{64+4*hd+k}, v{ob+2*k}, v{ob+2*k+1}")
        for k in range(2):
            s.i(f"v_cvt_pk_bf16_f32 v{72+2*hd+k}, v{ob+8+2*k}, v{ob+9+2*k}")
        ost.append(s.vm(f"buffer_store_dwordx4 {vr(64+4*hd,4)}, {vL16}, {sWS}, {T1} offen offset:{1536*hd} sc1"))
    ost.append(s.vm(f"buffer_store_dwordx4 {vr(72,4)}, {vLOW}, {sWS}, {T1} offen offset:1024 sc1"))
    stamp(s, "att_done")

    vAC = [4, 5, 6, 7]
    vPG2 = "v8"
    s.i(f"v_lshrrev_b32 v9, 4, {vL}\nv_and_b32 v10, 15, {vL}\nv_lshlrev_b32 v11, 9, v9\nv_lshl_add_u32 v11, v10, 4, v11")
    for sg in range(4):
        s.i(f"s_xor_b32 {T2}, {WV}, {sg}\ns_lshr_b32 {T3}, {T2}, 1\ns_mul_i32 {T3}, {T3}, {ATT}\ns_and_b32 {T2}, {T2}, 1\ns_lshl_b32 {T2}, {T2}, 8\ns_add_u32 {T2}, {T2}, {T3}")
        s.i(f"v_add_u32 v{vAC[sg]}, {T2}, v11")
    s.i(f"s_lshl_b32 {T2}, {RB}, 11\ns_add_u32 {T2}, {T2}, {FLAG_OFF}\nv_lshlrev_b32 {vPG2}, 7, v10\nv_add_u32 {vPG2}, {T2}, {vPG2}")
    s.i(f"s_lshr_b32 {T2}, {CG}, 3\ns_lshl_b32 {T3}, {RB}, 1\ns_add_u32 {T2}, {T2}, {T3}\ns_lshl_b32 {T2}, {T2}, 6\ns_lshl_b32 {T3}, {WV}, 4\ns_add_u32 {T2}, {T2}, {T3}")
    s.i(f"v_add_u32 v12, {T2}, v10\nv_mul_u32_u24 v12, 1280, v12\nv_lshl_add_u32 v12, v9, 3, v12\ns_and_b32 {T2}, {CG}, 7\ns_mul_i32 {T2}, {T2}, 160\nv_add_u32 v12, {T2}, v12")
    poll(s, vPG2, EV_H, 16)
    publish(s, EV_O, ost)
    for g in w2g[NW2_ATT:]:
        s.ext(g)
    AC2 = 64
    free = [('v', 32 + 4 * k) for k in range(8)] + [('v', 144 + 4 * k) for k in range(7)]
    actr, actt = {}, {}

    def act_group(i):
        gs = []
        for sg in range(4):
            g = []
            if sg == 0:
                ks_scalar(g, i, T1)
                g.append(It('i', f"s_lshl_b32 {T1}, {T1}, 11"))
                g.append(It('i', f"s_add_u32 {T1}, {T1}, {ACB}"))
            r = free.pop(0)
            actr[(i, sg)] = r
            tk = Tok('vm')
            actt[(i, sg)] = tk
            g.append(It('i', f"buffer_load_dwordx4 {R(r,4)}, v{vAC[sg]}, {sWS}, {T1} offen sc1", tok=tk))
            gs.append(g)
        return gs

    nissued = 0
    for i in range(3):
        for g in act_group(i):
            s.ext(g)
        nissued += 1
    RES = 14
    RES = 20
    rest = None
    for i in range(17):
        pend = []
        while nissued < 17 and len(free) >= 4 and not (nissued == 12 and i < 9):
            if nissued == 12:
                poll(s, vPG2, EV_O, 16)
                rest = [s.vm(f"buffer_load_dwordx2 {vr(RES+2*t,2)}, v12, {sX}, 0 offen offset:{32*t}") for t in range(5)]
            pend += act_group(nissued)
            nissued += 1
        for t in range(5):
            for sg in range(4):
                s.wait(w2t[(i, t)], actt[(i, sg)])
                d = vr(AC2 + 16 * t + 4 * sg, 4)
                s.i(f"v_mfma_f32_16x16x32_bf16 {d}, {R(w2regs[5*i+t],4)}, {R(actr[(i,sg)],4)}, {d if i else 0}")
                if pend and (4 * t + sg) % 2 == 1:
                    s.ext(pend.pop(0))
        for g in pend:
            s.ext(g)
        free += [actr[(i, sg)] for sg in range(4)] + [w2regs[5 * i + t] for t in range(5)]
    stamp(s, "g2_done")
    for sg in range(1, 4):
        s.i(f"s_xor_b32 {T2}, {WV}, {sg}\ns_mul_i32 {T2}, {T2}, 15360\ns_add_u32 {T2}, {T2}, {(sg-1)*5120}\nv_add_u32 v{3+sg}, {T2}, {vL16}")
    s.i(f"s_mul_i32 {T2}, {WV}, 15360\nv_add_u32 v7, {T2}, {vL16}")
    s.i("s_barrier")
    wt = []
    for sg in range(1, 4):
        for t in range(5):
            wt.append(s.ds(f"ds_write_b128 v{3+sg}, {vr(AC2+16*t+4*sg,4)} offset:{1024*t}"))
    s.wait(wt)
    s.i("s_barrier")
    rd = {}
    for t in range(5):
        for sg in range(1, 4):
            rd[(t, sg)] = s.ds(f"ds_read_b128 {vr(AC2+16*t+4*sg,4)}, v7 offset:{(sg-1)*5120+1024*t}")
    for t in range(5):
        b = AC2 + 16 * t
        s.wait(rest[t])
        s.i(f"v_lshlrev_b32 v32, 16, v{RES+2*t}\nv_and_b32 v33, 0xffff0000, v{RES+2*t}\nv_lshlrev_b32 v34, 16, v{RES+2*t+1}\nv_and_b32 v35, 0xffff0000, v{RES+2*t+1}")
        for k in range(4):
            s.i(f"v_add_f32 v{b+k}, v{b+k}, v{32+k}")
        s.wait(rd[(t, 3)])
        for k in range(4):
            s.i(f"v_add_f32 v{b+4+k}, v{b+4+k}, v{b+8+k}\nv_add_f32 v{b+k}, v{b+k}, v{b+12+k}")
        for k in range(4):
            s.i(f"v_add_f32 v{b+k}, v{b+k}, v{b+4+k}")
        s.i(f"v_cvt_pk_bf16_f32 v{b}, v{b}, v{b+1}\nv_cvt_pk_bf16_f32 v{b+1}, v{b+2}, v{b+3}")
        s.vm(f"buffer_store_dwordx2 {vr(b,2)}, v12, {sOUT}, 0 offen offset:{32*t}")
    if DEBUG:
        s.drain()
        s.i("s_memtime s[82:83]\ns_memrealtime s[58:59]\ns_waitcnt lgkmcnt(0)")
        s.i(f"s_lshl_b32 s60, s2, 2\ns_add_u32 s60, s60, {WV}\ns_lshl_b32 s60, s60, 6\ns_add_u32 s60, s60, {STAMP_OFF}\nv_mov_b32 v1, s60")
        for k in range(1, nstamp[0]):
            s.i(f"s_sub_u32 s61, s{STAMP0+2*k}, s{STAMP0}\nv_mov_b32 v2, s61\nglobal_store_dword v1, v2, s[22:23] offset:{4*k}")
        s.i(f"s_sub_u32 s61, s82, s{STAMP0}\nv_mov_b32 v2, s61\nglobal_store_dword v1, v2, s[22:23] offset:{4*nstamp[0]}")
        s.i(f"v_mov_b32 v2, s58\nglobal_store_dword v1, v2, s[22:23]")
    s.label("L_end")
    s.i("s_endpgm")
    return s


def main():
    s = build()
    items = resolve_waits(s.a)
    items, npad = pad_hazards(items, verbose="--verbose" in sys.argv)
    hdr = open("cdna_kernels/" + NAME + ".s.ref").read().split("\n")
    hdr = [l for l in hdr[:13] if "@launch" not in l]
    txt = "\n".join(hdr) + f"""
; @launch grid=(256,1,1) block=(256,1,1) lds=163840
.amdgcn_target "amdgcn-amd-amdhsa--gfx950"
.text
.globl {NAME}_kernel
.p2align 8
.type {NAME}_kernel,@function
{NAME}_kernel:
{render(items)}
.section .rodata,"a"
.p2align 6
.amdhsa_kernel {NAME}_kernel
  .amdhsa_next_free_vgpr 512
  .amdhsa_next_free_sgpr 102
  .amdhsa_accum_offset 256
  .amdhsa_group_segment_fixed_size 0
  .amdhsa_kernarg_size 80
  .amdhsa_user_sgpr_count 2
  .amdhsa_user_sgpr_kernarg_segment_ptr 1
  .amdhsa_system_sgpr_workgroup_id_x 1
.end_amdhsa_kernel
"""
    open(OUT, "w").write(txt)
    n = sum(1 for x in items if x.k == 'i')
    print(f"{OUT}: {n} instrs, {npad} pad states; stamps: {stamp_names}")
    open(OUT + ".stamps", "w").write(repr(stamp_names + ["end"]))


main()
```
